```python
import torch

def _softmax(x, axis=-1):
    return torch.softmax(x, dim=axis)
def _gelu(x):
    return torch.nn.functional.gelu(x, approximate="tanh")
def _silu(x):
    return torch.nn.functional.silu(x)
def _sigmoid(x):
    return torch.sigmoid(x)
def _layernorm(x, axis=-1, eps=1e-5):
    m = x.mean(dim=axis, keepdim=True)
    v = x.var(dim=axis, keepdim=True, unbiased=False)
    return (x - m) / torch.sqrt(v + eps)
def _scatter_add(tgt, idx, src, axis=0):
    return tgt.clone().index_add_(axis, idx, src)
def _segment_sum(src, seg, n):
    out = torch.zeros((n,) + src.shape[1:], dtype=src.dtype)
    return out.index_add_(0, seg, src)
def _pad(x, pw):
    flat = tuple(v for pair in reversed(pw) for v in pair)
    return torch.nn.functional.pad(x, flat)

kernel_name = 'standalone__gqa_softmax__near_ridge'

def setup_inputs():

    _w = (lambda a: (lambda t: t.to(torch.bfloat16) if t.is_floating_point() else t)(torch.as_tensor(a)))
    B, Hq, Hkv, Sq, Sk, D = 16, 32, 8, 96, 512, 128
    return {
        "q": _w((lambda *s: torch.randn(*s, dtype=torch.bfloat16) * 0.8)(B, Hq, Sq, D)),
        "k": _w((lambda *s: torch.randn(*s, dtype=torch.bfloat16) * 0.8)(B, Hkv, Sk, D)),
        "v": _w((lambda *s: torch.randn(*s, dtype=torch.bfloat16) * 0.05)(B, Hkv, Sk, D)),
    }

def reference(q, k, v):
    B, Hq, Sq, D = q.shape
    Hkv = k.shape[1]
    rep = Hq // Hkv
    k = (lambda x, n, axis: torch.repeat_interleave(x, n, dim=axis))(k, rep, axis=1)
    v = (lambda x, n, axis: torch.repeat_interleave(x, n, dim=axis))(v, rep, axis=1)
    scale = D ** -0.5
    scores = torch.einsum("bhqd,bhkd->bhqk", q, k) * scale
    p = _softmax(scores, axis=-1)
    return torch.einsum("bhqk,bhkd->bhqd", p, v)
```

```python
import struct, math

KN = "standalone__gqa_softmax__near_ridge_kernel"
PITCH = 1056
TILE = 8 * PITCH
SLOT = 4 * TILE
QB = 3 * SLOT
LDS_BYTES = 163840

def f32bits(x):
    return struct.unpack("<I", struct.pack("<f", x))[0]

C_SCALE = math.log2(math.e) / math.sqrt(128.0)

V_OFFK, V_OFFV, V_PATK, V_PATV = 1, 2, 3, 4
V_KX, V_KY, V_VX, V_VY = 5, 6, 7, 8
V_LA, V_LC = 9, 10
V_MA, V_MC = 13, 14
V_T0, V_T1 = 11, 12
V_ROW = 15
NEGA, NEGC = 16, 32
S0, S1, S2 = 48, 64, 80
P0, P1, P2 = 96, 104, 112
TMP = 120
OA, OC = 128, 192
A_QA, A_QC, A_KX, A_KY, A_VX, A_VY = 0, 32, 64, 96, 128, 160

S_GRP, S_HALF, S_W = 14, 15, 16
SRD_Q, SRD_K, SRD_V, SRD_O = 20, 24, 28, 32
S_QOFF, S_KVOFF, S_WLDS = 36, 37, 38
S_E, S_P, S_XOFF, S_YOFF = 39, 40, 41, 42
S_C, S_MODE = 43, 44
S_T0, S_T1, S_T2, S_T3 = 45, 46, 47, 48
S_THR = 49
S_CNT = 50

def v(n, cnt=1):
    return f"v{n}" if cnt == 1 else f"v[{n}:{n+cnt-1}]"
def a(n, cnt=1):
    return f"a{n}" if cnt == 1 else f"a[{n}:{n+cnt-1}]"
def s(n, cnt=1):
    return f"s{n}" if cnt == 1 else f"s[{n}:{n+cnt-1}]"

class Asm:
    def __init__(self):
        self.L = []
    def __call__(self, line):
        self.L.append(line)
    def text(self):
        return "\n".join(self.L) + "\n"

def header(A, lds=LDS_BYTES, grid=256):
    A(f"; @launch grid=({grid},1,1) block=(256,1,1) lds={lds}")
    A('.amdgcn_target "amdgcn-amd-amdhsa--gfx950"')
    A(".text")
    A(f".globl {KN}")
    A(".p2align 8")
    A(f".type {KN},@function")
    A(f"{KN}:")

def footer(A, nv=512, acc=256):
    A("s_endpgm")
    A('.section .rodata,"a"')
    A(".p2align 6")
    A(f".amdhsa_kernel {KN}")
    A(f"  .amdhsa_next_free_vgpr {nv}")
    A("  .amdhsa_next_free_sgpr 102")
    A(f"  .amdhsa_accum_offset {acc}")
    A("  .amdhsa_group_segment_fixed_size 0")
    A("  .amdhsa_kernarg_size 48")
    A("  .amdhsa_user_sgpr_count 2")
    A("  .amdhsa_user_sgpr_kernarg_segment_ptr 1")
    A("  .amdhsa_system_sgpr_workgroup_id_x 1")
    A(".end_amdhsa_kernel")
```

```python
import sys
sys.path.insert(0, "gen")
from common import *

def prologue_setup(A):
    A("s_cmp_ge_u32 s2, 256")
    A("s_cbranch_scc1 L_end")
    A("s_load_dwordx4 s[4:7], s[0:1], 0")
    A("s_load_dwordx4 s[8:11], s[0:1], 16")
    A("s_and_b32 s14, s2, 7")
    A("s_lshr_b32 s15, s2, 4")
    A("s_lshl_b32 s15, s15, 3")
    A("s_or_b32 s14, s14, s15")
    A("s_bfe_u32 s15, s2, 0x10003")
    A("v_lshrrev_b32 v5, 6, v0")
    A("v_and_b32 v0, 63, v0")
    A("v_readfirstlane_b32 s16, v5")
    A("v_lshrrev_b32 v5, 4, v0")
    A("v_lshrrev_b32 v6, 5, v0")
    A("v_and_b32 v7, 15, v0")
    A("v_xor_b32 v7, v7, v6")
    A("v_lshlrev_b32 v7, 4, v7")
    A(f"v_lshl_add_u32 {v(V_OFFK)}, v5, 8, v7")
    A(f"v_lshlrev_b32 {v(V_OFFV)}, 4, v0")
    A("v_and_b32 v5, 3, v0")
    A("v_lshlrev_b32 v5, 1, v5")
    A("v_bfe_u32 v6, v0, 4, 1")
    A("v_add_u32 v5, v5, v6")
    A(f"v_mul_u32_u24 v5, {PITCH}, v5")
    A("v_bfe_u32 v6, v0, 2, 2")
    A("v_lshl_add_u32 v5, v6, 8, v5")
    A("v_lshrrev_b32 v6, 1, v6")
    A("v_lshrrev_b32 v7, 5, v0")
    A("v_xor_b32 v6, v6, v7")
    A(f"v_lshl_add_u32 {v(V_PATK)}, v6, 4, v5")
    A("v_bfe_u32 v5, v0, 2, 2")
    A(f"v_mul_u32_u24 v5, {2*PITCH}, v5")
    A("v_lshrrev_b32 v6, 5, v0")
    A("v_lshl_add_u32 v5, v6, 8, v5")
    A("v_bfe_u32 v6, v0, 4, 1")
    A("v_lshl_add_u32 v5, v6, 5, v5")
    A("v_and_b32 v6, 3, v0")
    A(f"v_lshl_add_u32 {v(V_PATV)}, v6, 3, v5")
    A("v_and_b32 v5, 3, v0")
    A("v_lshlrev_b32 v5, 3, v5")
    A("v_bfe_u32 v6, v0, 2, 3")
    A("v_add_u32 v5, v5, v6")
    A("v_lshlrev_b32 v5, 8, v5")
    A("v_lshrrev_b32 v6, 5, v0")
    A(f"v_lshl_add_u32 {v(V_ROW)}, v6, 4, v5")
    A(f"v_mov_b32 {v(V_MA)}, 0xff800000")
    A(f"v_mov_b32 {v(V_MC)}, 0xff800000")
    A("s_waitcnt lgkmcnt(0)")
    for base, src, n in ((SRD_Q, 4, 12582912), (SRD_K, 6, 16777216), (SRD_V, 8, 16777216), (SRD_O, 10, 12582912)):
        A(f"s_mov_b32 s{base}, s{src}")
        A(f"s_mov_b32 s{base+1}, s{src+1}")
        A(f"s_mov_b32 s{base+2}, {n}")
        A(f"s_mov_b32 s{base+3}, 0x20000")
    A(f"s_lshl_b32 {s(S_T0)}, {s(S_GRP)}, 2")
    A(f"s_lshl_b32 {s(S_T1)}, {s(S_HALF)}, 1")
    A(f"s_add_u32 {s(S_T0)}, {s(S_T0)}, {s(S_T1)}")
    A(f"s_mul_i32 {s(S_QOFF)}, {s(S_T0)}, 24576")
    A(f"s_lshl_b32 {s(S_KVOFF)}, {s(S_GRP)}, 17")
    A(f"s_lshl_b32 {s(S_T0)}, {s(S_W)}, 12")
    A(f"s_add_u32 {s(S_KVOFF)}, {s(S_KVOFF)}, {s(S_T0)}")
    A(f"s_mul_i32 {s(S_WLDS)}, {s(S_W)}, {4*PITCH}")
    A(f"s_and_b32 {s(S_E)}, {s(S_W)}, 1")
    A(f"s_lshr_b32 {s(S_P)}, {s(S_W)}, 1")
    A(f"s_mul_i32 {s(S_XOFF)}, {s(S_E)}, {TILE}")
    A(f"s_sub_u32 {s(S_YOFF)}, {TILE}, {s(S_XOFF)}")
    A(f"s_mov_b32 {s(S_C)}, {f32bits(C_SCALE):#x}")
    A(f"s_mov_b32 {s(S_MODE)}, 0")
    A(f"s_mov_b32 {s(S_THR)}, {f32bits(2.0**20):#x}")

def dma_q(A):
    A(f"s_mul_i32 {s(S_T0)}, {s(S_W)}, 12288")
    A(f"s_add_u32 {s(S_T0)}, {s(S_T0)}, {s(S_QOFF)}")
    A(f"s_mul_i32 {s(S_T1)}, {s(S_W)}, {12*PITCH}")
    for t in range(12):
        if t and t % 4 == 0:
            A(f"s_add_u32 {s(S_T0)}, {s(S_T0)}, 4096")
        A(f"s_add_u32 m0, {s(S_T1)}, {QB + t*PITCH - 1024*(t%4)}")
        A("s_nop 0")
        A(f"buffer_load_dwordx4 {v(V_OFFK)}, {s(SRD_Q,4)}, {s(S_T0)} offen offset:{1024*(t%4)} lds")

def dma_kv(A, step, which):
    slot = (step % 4) * SLOT + which * 2 * TILE
    A(f"s_add_u32 {s(S_T0)}, {s(S_KVOFF)}, {step*16384}")
    for t in range(4):
        A(f"s_add_u32 m0, {s(S_WLDS)}, {slot + t*PITCH - 1024*t}")
        A("s_nop 0")
        voff = V_OFFK if which == 0 else V_OFFV
        srd = SRD_K if which == 0 else SRD_V
        A(f"buffer_load_dwordx4 {v(voff)}, {s(srd,4)}, {s(S_T0)} offen offset:{1024*t} lds")

def read_k(A, dst, addr):
    for k in range(8):
        A(f"ds_read_b128 {a(dst+4*k,4)}, {v(addr)} offset:{32*k}")

def read_v(A, dst, addr):
    for j in range(2):
        for b in range(4):
            for u in range(2):
                A(f"ds_read_b64_tr_b16 {a(dst + (j*4+b)*4 + u*2, 2)}, {v(addr)} offset:{j*PITCH + u*512 + 64*b}")

def qk(A, S, K, Q, C):
    for k in range(8):
        c = C if k == 0 else v(S, 16)
        A(f"v_mfma_f32_32x32x16_bf16 {v(S,16)}, {a(K+4*k,4)}, {a(Q+4*k,4)}, {c}")

def pv(A, O, V, P, first=False):
    for j in range(2):
        for b in range(4):
            c = "0" if (first and j == 0) else v(O+16*b, 16)
            A(f"v_mfma_f32_32x32x16_bf16 {v(O+16*b,16)}, {a(V+(j*4+b)*4,4)}, {v(P+4*j,4)}, {c}")

def softmax(A, S, P, L):
    for g in range(16):
        A(f"v_exp_f32 {v(S+g)}, {v(S+g)}")
    A("s_nop 0")
    for g in range(16):
        A(f"v_add_f32 {v(L)}, {v(L)}, {v(S+g)}")
    for t in range(8):
        A(f"v_cvt_pk_bf16_f32 {v(P+t)}, {v(S+2*t)}, {v(S+2*t+1)}")
    A("s_nop 1")

def first_max(A, S, NEG, MT):
    A(f"v_max3_f32 {v(V_T0)}, {v(S)}, {v(S+1)}, {v(MT)}")
    for g in range(2, 16, 2):
        A(f"v_max3_f32 {v(V_T0)}, {v(S+g)}, {v(S+g+1)}, {v(V_T0)}")
    A(f"v_mov_b32 {v(V_T1)}, {v(V_T0)}")
    A("s_nop 1")
    A(f"v_permlane32_swap_b32 {v(V_T0)}, {v(V_T1)}")
    A("s_nop 1")
    A(f"v_max_f32 {v(V_T0)}, {v(V_T0)}, {v(V_T1)}")
    for g in range(16):
        A(f"v_sub_f32 {v(NEG+g)}, 0, {v(V_T0)}")
    for g in range(16):
        A(f"v_sub_f32 {v(S+g)}, {v(S+g)}, {v(V_T0)}")

def scale_q(A, src, dst):
    for r in range(32):
        A(f"v_lshlrev_b32 {v(TMP)}, 16, {v(src+r)}")
        A(f"v_and_b32 {v(TMP+1)}, 0xffff0000, {v(src+r)}")
        A(f"v_mul_f32 {v(TMP)}, {s(S_C)}, {v(TMP)}")
        A(f"v_mul_f32 {v(TMP+1)}, {s(S_C)}, {v(TMP+1)}")
        A(f"v_cvt_pk_bf16_f32 {v(TMP+2)}, {v(TMP)}, {v(TMP+1)}")
        A(f"v_accvgpr_write_b32 {a(dst+r)}, {v(TMP+2)}")

def store_block(A, O, scale_reg, b, imm_base, rowreg, T):
    for ap in (0, 2):
        for half, aa in enumerate((ap, ap+1)):
            for i in range(4):
                A(f"v_mul_f32 {v(O+4*aa+i)}, {v(scale_reg)}, {v(O+4*aa+i)}")
            A(f"v_cvt_pk_bf16_f32 {v(T+2*half)}, {v(O+4*aa)}, {v(O+4*aa+1)}")
            A(f"v_cvt_pk_bf16_f32 {v(T+2*half+1)}, {v(O+4*aa+2)}, {v(O+4*aa+3)}")
        A("s_nop 1")
        A(f"v_permlane32_swap_b32 {v(T)}, {v(T+2)}")
        A(f"v_permlane32_swap_b32 {v(T+1)}, {v(T+3)}")
        A("s_nop 1")
        A(f"buffer_store_dwordx4 {v(T,4)}, {v(rowreg)}, {s(SRD_O,4)}, {s(S_T2)} offen offset:{imm_base + 64*b + 16*ap}")
        A("s_nop 1")

def gen(path):
    A = Asm()
    header(A)
    prologue_setup(A)
    dma_q(A)
    for st in range(3):
        dma_kv(A, st, 0); dma_kv(A, st, 1)
    A(f"s_mul_i32 {s(S_T0)}, {s(S_P)}, {3*TILE}")
    A(f"s_add_u32 {s(S_T0)}, {s(S_T0)}, {QB}")
    A(f"s_add_u32 {s(S_T1)}, {s(S_T0)}, {2*TILE}")
    A(f"s_mul_i32 {s(S_T2)}, {s(S_E)}, {TILE}")
    A(f"s_add_u32 {s(S_T0)}, {s(S_T0)}, {s(S_T2)}")
    A(f"v_add_u32 {v(V_KX)}, {s(S_T0)}, {v(V_PATK)}")
    A(f"v_add_u32 {v(V_KY)}, {s(S_T1)}, {v(V_PATK)}")
    A("s_waitcnt vmcnt(24)")
    A("s_barrier")
    for k in range(8):
        A(f"ds_read_b128 {v(OA+4*k,4)}, {v(V_KX)} offset:{32*k}")
    for k in range(8):
        A(f"ds_read_b128 {v(OA+32+4*k,4)}, {v(V_KY)} offset:{32*k}")
    A("s_waitcnt lgkmcnt(0)")
    scale_q(A, OA, A_QA)
    scale_q(A, OA+32, A_QC)
    A("L_main:")
    A(f"v_mov_b32 {v(V_LA)}, 0")
    A(f"v_mov_b32 {v(V_LC)}, 0")
    for st in range(8):
        n = 16 if st <= 5 else (8 if st == 6 else 0)
        A(f"s_waitcnt vmcnt({n}) lgkmcnt(0)")
        A("s_barrier")
        if st + 3 <= 7:
            dma_kv(A, st+3, 0); dma_kv(A, st+3, 1)
        sb = (st % 4) * SLOT
        A(f"s_add_u32 {s(S_T0)}, {s(S_XOFF)}, {sb}")
        A(f"s_add_u32 {s(S_T1)}, {s(S_YOFF)}, {sb}")
        A(f"v_add_u32 {v(V_KX)}, {s(S_T0)}, {v(V_PATK)}")
        A(f"v_add_u32 {v(V_KY)}, {s(S_T1)}, {v(V_PATK)}")
        A(f"s_add_u32 {s(S_T0)}, {s(S_T0)}, {2*TILE}")
        A(f"s_add_u32 {s(S_T1)}, {s(S_T1)}, {2*TILE}")
        A(f"v_add_u32 {v(V_VX)}, {s(S_T0)}, {v(V_PATV)}")
        A(f"v_add_u32 {v(V_VY)}, {s(S_T1)}, {v(V_PATV)}")
        read_k(A, A_KX, V_KX); read_k(A, A_KY, V_KY)
        read_v(A, A_VX, V_VX); read_v(A, A_VY, V_VY)
        A("s_waitcnt lgkmcnt(0)")
        first = (st == 0)
        qk(A, S0, A_KX, A_QA, "0" if first else v(NEGA,16))
        qk(A, S1, A_KX, A_QC, "0" if first else v(NEGC,16))
        A("s_nop 15")
        if first:
            first_max(A, S0, NEGA, V_MA)
            first_max(A, S1, NEGC, V_MC)
        A("s_nop 1")
        qk(A, S2, A_KY, A_QA, v(NEGA,16))
        softmax(A, S0, P0, V_LA)
        softmax(A, S1, P1, V_LC)
        A("s_nop 15")
        softmax(A, S2, P2, V_LA)
        pv(A, OA, A_VX, P0, first)
        pv(A, OC, A_VX, P1, first)
        pv(A, OA, A_VY, P2, False)
    A("s_nop 15")
    A("s_nop 15")
    A(f"v_cmp_nlt_f32 vcc, {v(V_LA)}, {s(S_THR)}")
    A(f"s_mov_b64 s[52:53], vcc")
    A(f"v_cmp_nlt_f32 vcc, {v(V_LC)}, {s(S_THR)}")
    A("s_nop 4")
    A(f"s_or_b64 s[52:53], s[52:53], vcc")
    A(f"s_cmp_lg_u64 s[52:53], 0")
    A(f"s_cselect_b32 {s(S_T0)}, 1, 0")
    for L in (V_LA, V_LC):
        A(f"v_mov_b32 {v(V_T0)}, {v(L)}")
        A("s_nop 1")
        A(f"v_permlane32_swap_b32 {v(L)}, {v(V_T0)}")
        A("s_nop 1")
        A(f"v_add_f32 {v(L)}, {v(L)}, {v(V_T0)}")
    XW = 9216
    FL = 4 * XW
    A(f"s_mul_i32 {s(S_T1)}, {s(S_W)}, {XW}")
    A(f"v_add_u32 {v(V_KX)}, {s(S_T1)}, {v(V_OFFV)}")
    A(f"s_xor_b32 {s(S_T2)}, {s(S_W)}, 1")
    A(f"s_mul_i32 {s(S_T2)}, {s(S_T2)}, {XW}")
    A(f"v_add_u32 {v(V_KY)}, {s(S_T2)}, {v(V_OFFV)}")
    A(f"v_mov_b32 {v(TMP)}, {v(NEGC)}")
    A(f"v_mov_b32 {v(TMP+1)}, {v(V_LC)}")
    A(f"v_mov_b32 {v(TMP+2)}, {s(S_T0)}")
    A(f"v_mov_b32 {v(TMP+3)}, 0")
    A(f"ds_write_b128 {v(V_KX)}, {v(TMP,4)} offset:8192")
    A(f"s_cmp_eq_u32 {s(S_E)}, 0")
    A("s_cbranch_scc0 L_send1")
    for g in range(8):
        A(f"ds_write_b128 {v(V_KX)}, {v(OC+32+4*g,4)} offset:{1024*g}")
    A("s_branch L_sent")
    A("L_send1:")
    for g in range(8):
        A(f"ds_write_b128 {v(V_KX)}, {v(OC+4*g,4)} offset:{1024*g}")
    A("L_sent:")
    A(f"v_rcp_f32 {v(V_T0)}, {v(V_LA)}")
    A(f"s_mul_i32 {s(S_T2)}, {s(S_P)}, 3")
    A(f"s_add_u32 {s(S_T2)}, {s(S_T2)}, {s(S_E)}")
    A(f"s_lshl_b32 {s(S_T2)}, {s(S_T2)}, 13")
    A(f"s_add_u32 {s(S_T2)}, {s(S_T2)}, {s(S_QOFF)}")
    for b in range(4):
        store_block(A, OA+16*b, V_T0, b, 0, V_ROW, TMP+4)
    A("s_waitcnt lgkmcnt(0)")
    A("s_barrier")
    A(f"ds_read_b128 {v(TMP,4)}, {v(V_KY)} offset:8192")
    for g in range(8):
        A(f"ds_read_b128 {v(S0+4*g,4)}, {v(V_KY)} offset:{1024*g}")
    A(f"v_mov_b32 {v(V_VX)}, 0")
    for w in range(4):
        A(f"ds_read_b32 {v(P0+w)}, {v(V_VX)} offset:{w*XW + 8192 + 8}")
    A("s_waitcnt lgkmcnt(0)")
    A(f"v_or_b32 {v(P0)}, {v(P0)}, {v(P0+1)}")
    A(f"v_or_b32 {v(P0+2)}, {v(P0+2)}, {v(P0+3)}")
    A(f"v_or_b32 {v(P0)}, {v(P0)}, {v(P0+2)}")
    A("s_nop 1")
    A(f"v_readfirstlane_b32 {s(S_T0)}, {v(P0)}")
    A("s_nop 3")
    A(f"s_xor_b32 {s(S_T1)}, {s(S_MODE)}, 1")
    A(f"s_and_b32 {s(S_T0)}, {s(S_T0)}, {s(S_T1)}")
    A(f"s_cmp_lg_u32 {s(S_T0)}, 0")
    A("s_cbranch_scc1 L_redo")
    A(f"v_min_f32 {v(V_T0)}, {v(NEGC)}, {v(TMP)}")
    A(f"v_sub_f32 {v(V_T1)}, {v(V_T0)}, {v(NEGC)}")
    A(f"v_sub_f32 {v(V_T0)}, {v(V_T0)}, {v(TMP)}")
    A(f"v_exp_f32 {v(V_T1)}, {v(V_T1)}")
    A(f"v_exp_f32 {v(V_T0)}, {v(V_T0)}")
    A("s_nop 0")
    A(f"v_mul_f32 {v(TMP+2)}, {v(V_LC)}, {v(V_T1)}")
    A(f"v_fma_f32 {v(TMP+2)}, {v(TMP+1)}, {v(V_T0)}, {v(TMP+2)}")
    A(f"v_rcp_f32 {v(TMP+2)}, {v(TMP+2)}")
    A("s_nop 0")
    A(f"v_mul_f32 {v(V_T1)}, {v(V_T1)}, {v(TMP+2)}")
    A(f"v_mul_f32 {v(V_T0)}, {v(V_T0)}, {v(TMP+2)}")
    A(f"s_mul_i32 {s(S_T2)}, {s(S_P)}, 3")
    A(f"s_add_u32 {s(S_T2)}, {s(S_T2)}, 2")
    A(f"s_lshl_b32 {s(S_T2)}, {s(S_T2)}, 13")
    A(f"s_add_u32 {s(S_T2)}, {s(S_T2)}, {s(S_QOFF)}")
    A(f"v_mov_b32 {v(TMP+3)}, 1.0")
    for e in range(2):
        if e == 0:
            A(f"s_cmp_eq_u32 {s(S_E)}, 0")
            A("s_cbranch_scc0 L_comb1")
        else:
            A("L_comb1:")
        keep = OC + 32 * e
        for r in range(32):
            A(f"v_mul_f32 {v(keep+r)}, {v(V_T1)}, {v(keep+r)}")
            A(f"v_fma_f32 {v(keep+r)}, {v(S0+r)}, {v(V_T0)}, {v(keep+r)}")
        for bb in range(2):
            store_block(A, keep + 16*bb, TMP+3, 2*e + bb, 0, V_ROW, TMP+4)
        if e == 0:
            A("s_branch L_end")
    A("s_branch L_end")
    A("L_redo:")
    A("s_waitcnt vmcnt(0) lgkmcnt(0)")
    A("s_barrier")
    A(f"s_mov_b32 {s(S_CNT)}, 0")
    A(f"v_mov_b32 {v(V_KX)}, {v(V_PATK)}")
    A(f"v_add_u32 {v(V_KY)}, {TILE}, {v(V_PATK)}")
    A("L_mx:")
    A(f"s_add_u32 {s(S_T0)}, {s(S_KVOFF)}, {s(S_CNT)}")
    for t in range(4):
        A(f"s_add_u32 m0, {s(S_WLDS)}, {t*PITCH - 1024*t}" if t*PITCH - 1024*t else f"s_mov_b32 m0, {s(S_WLDS)}")
        A("s_nop 0")
        A(f"buffer_load_dwordx4 {v(V_OFFK)}, {s(SRD_K,4)}, {s(S_T0)} offen offset:{1024*t} lds")
    A("s_waitcnt vmcnt(0)")
    A("s_barrier")
    read_k(A, A_KX, V_KX); read_k(A, A_KY, V_KY)
    A("s_waitcnt lgkmcnt(0)")
    for K in (A_KX, A_KY):
        qk(A, S0, K, A_QA, "0")
        qk(A, S1, K, A_QC, "0")
        A("s_nop 15")
        for g in range(0, 16, 2):
            A(f"v_max3_f32 {v(V_MA)}, {v(S0+g)}, {v(S0+g+1)}, {v(V_MA)}")
        for g in range(0, 16, 2):
            A(f"v_max3_f32 {v(V_MC)}, {v(S1+g)}, {v(S1+g+1)}, {v(V_MC)}")
        A("s_nop 7")
    A("s_barrier")
    A(f"s_add_u32 {s(S_CNT)}, {s(S_CNT)}, 16384")
    A(f"s_cmp_lt_u32 {s(S_CNT)}, {8*16384}")
    A("s_cbranch_scc1 L_mx")
    for M in (V_MA, V_MC):
        A(f"v_mov_b32 {v(V_T0)}, {v(M)}")
        A("s_nop 1")
        A(f"v_permlane32_swap_b32 {v(M)}, {v(V_T0)}")
        A("s_nop 1")
        A(f"v_max_f32 {v(M)}, {v(M)}, {v(V_T0)}")
    A(f"s_mov_b32 {s(S_MODE)}, 1")
    for st in range(3):
        dma_kv(A, st, 0); dma_kv(A, st, 1)
    A("s_branch L_main")
    A("L_end:")
    footer(A)
    open(path, "w").write(A.text())

if __name__ == "__main__":
    gen(sys.argv[1] if len(sys.argv) > 1 else "v1.s")
```
